```python
import torch

def _softmax(x, axis=-1):
    return torch.softmax(x, dim=axis)
def _gelu(x):
    return torch.nn.functional.gelu(x, approximate="tanh")
def _silu(x):
    return torch.nn.functional.silu(x)
def _sigmoid(x):
    return torch.sigmoid(x)
def _layernorm(x, axis=-1, eps=1e-5):
    m = x.mean(dim=axis, keepdim=True)
    v = x.var(dim=axis, keepdim=True, unbiased=False)
    return (x - m) / torch.sqrt(v + eps)
def _scatter_add(tgt, idx, src, axis=0):
    return tgt.clone().index_add_(axis, idx, src)
def _segment_sum(src, seg, n):
    out = torch.zeros((n,) + src.shape[1:], dtype=src.dtype)
    return out.index_add_(0, seg, src)
def _pad(x, pw):
    flat = tuple(v for pair in reversed(pw) for v in pair)
    return torch.nn.functional.pad(x, flat)

kernel_name = 'standalone__deep_cross_wide_deep__recsys'

def setup_inputs():

    _w = (lambda a: (lambda t: t.to(torch.bfloat16) if t.is_floating_point() else t)(torch.as_tensor(a)))
    B, F, D = 16384, 100, 32
    V, Nd = min(100000, 100000), 13
    Din = F * D
    H = 4 * D
    return {
        "idx": _w((lambda lo, hi, *s: torch.randint(lo, hi, s))(0, V, B, F).to(torch.int64)),
        "table": _w((lambda *s: torch.randn(*s, dtype=torch.bfloat16) * 1.6)(V, D) * 0.05),
        "x_wide": _w((lambda *s: torch.randn(*s, dtype=torch.bfloat16) * 0.8)(B, Nd)),
        "w_wide": _w((lambda *s: torch.randn(*s, dtype=torch.bfloat16) * 0.8)(Nd) * 0.05),
        "b_wide": _w((lambda *s: torch.randn(*s, dtype=torch.bfloat16) * 0.8)(1) * 0.01),
        "W1": _w((lambda *s: torch.randn(*s, dtype=torch.bfloat16) * 1.6)(Din, H) * (2.0 / Din) ** 0.5),
        "b1": _w((lambda *s: torch.randn(*s, dtype=torch.bfloat16) * 1.6)(H) * 0.01),
        "W2": _w((lambda *s: torch.randn(*s, dtype=torch.bfloat16) * 1.6)(H) * (1.0 / H) ** 0.5),
        "b2": _w((lambda *s: torch.randn(*s, dtype=torch.bfloat16) * 1.6)(1) * 0.01),
    }

def reference(idx, table, x_wide, w_wide, b_wide, W1, b1, W2, b2):
    emb = table[idx]
    deep_in = emb.reshape(emb.shape[0], -1)
    h = deep_in @ W1 + b1
    h = h * (lambda x, dt: x.to(dt))(h > 0, h.dtype)
    deep_logit = h @ W2 + b2
    wide_logit = x_wide @ w_wide + b_wide
    return _sigmoid(wide_logit + deep_logit)
```

```python
import sys, argparse

KN = "standalone__deep_cross_wide_deep__recsys"

class G:
    def __init__(self):
        self.L = []
        self.vm = []
    def e(self, s): self.L.append("    " + s)
    def c(self, s): self.L.append("    ; " + s)
    def lab(self, s): self.L.append(s + ":")
    def vmem(self, s, tag):
        self.e(s); self.vm.append(tag)
        assert len(self.vm) <= 63, "vmcnt overflow"
    def wait_vm(self, tags, extra=""):
        idx = [i for i, t in enumerate(self.vm) if t in tags]
        if not idx:
            if extra: self.e("s_waitcnt " + extra)
            return
        last = max(idx)
        n = len(self.vm) - 1 - last
        self.e(f"s_waitcnt vmcnt({n}) {extra}".rstrip())
        self.vm = self.vm[last + 1:]

def gen(R=6, stamps=False, idx_aux="", warm=True, tbl_aux="", w1_aux=""):
    g = G(); e = g.e
    D = R - 1
    SLOT = 24576
    NCH = 50
    LDS_SCR = R * SLOT
    lds_bytes = LDS_SCR + 1024
    vLane, vPiece, vIdxOff, vW1off, vL16, vT0, vT1, vB8 = 1, 2, 3, 4, 5, 6, 7, 8
    nwin = (R + 1) // 2
    vRd = [[9 + 2 * i, 10 + 2 * i] for i in range(nwin)]
    vTr = [9 + 2 * nwin + i for i in range(nwin)]
    assert vTr[-1] < 20
    vDummy = 20; vWide = 21; vZ0 = 22; vZ1 = 23
    ACC = [24, 40]
    EB = [56, 60, 64, 68]
    IDX = [72, 88]
    CINIT = 88
    B1RAW = 104
    WV0 = 112
    def wfrag(F):
        if F < 36: return f"v[{WV0+4*F}:{WV0+4*F+3}]"
        a = 4 * (F - 36); return f"a[{a}:{a+3}]"
    def wfrag_half(F, u):
        if F < 36: b = WV0 + 4 * F + 2 * u; return f"v[{b}:{b+1}]"
        a = 4 * (F - 36) + 2 * u; return f"a[{a}:{a+1}]"
    PART = 112
    W2RAW = 144; W2F = 152
    XW = 168
    sIdx = [4, 5]; sW1 = 6; sMA = 7; sMW = 92; sPw = 93; sPw2 = 94; sPr = 95; sPr2 = 96; sT = 77; sT2 = 91; sWv = 3
    hdr = f"""; Wide&Deep forward: sigmoid(x_wide.w_wide + b_wide + relu(concat(table[idx]) @ W1 + b1) . W2 + b2)
; @launch grid=(256,1,1) block=(256,1,1) lds={lds_bytes}
.amdgcn_target "amdgcn-amd-amdhsa--gfx950"
.text
.globl {KN}_kernel
.p2align 8
.type {KN}_kernel,@function
{KN}_kernel:"""
    g.L.append(hdr)
    e("s_cmp_ge_u32 s2, 256"); e("s_cbranch_scc1 L_done")
    if stamps: e("s_memrealtime s[98:99]")
    e("s_load_dwordx16 s[44:59], s[0:1], 0")
    e("s_load_dwordx8 s[60:67], s[0:1], 64")
    e(f"v_and_b32 v{vLane}, 63, v0")
    e(f"v_lshrrev_b32 v{vT0}, 6, v0")
    e(f"v_lshrrev_b32 v{vT1}, 4, v{vLane}")
    e(f"v_readfirstlane_b32 s{sWv}, v{vT0}")
    e(f"v_and_b32 v{vPiece}, 3, v{vLane}")
    e(f"v_lshlrev_b32 v{vIdxOff}, 4, v{vPiece}")
    e(f"v_xor_b32 v{vPiece}, v{vPiece}, v{vT1}")
    e(f"v_lshlrev_b32 v{vPiece}, 4, v{vPiece}")
    e(f"v_lshrrev_b32 v{vT0}, 2, v{vLane}")
    e(f"v_mul_u32_u24 v{vDummy}, 400, v{vT0}")
    e(f"v_add_u32 v{vIdxOff}, v{vIdxOff}, v{vDummy}")
    e(f"v_lshlrev_b32 v{vW1off}, 2, v{vT1}")
    e(f"v_and_b32 v{vDummy}, 15, v{vLane}")
    e(f"v_xor_b32 v{vW1off}, v{vW1off}, v{vDummy}")
    e(f"v_lshlrev_b32 v{vW1off}, 4, v{vW1off}")
    e(f"v_lshl_add_u32 v{vW1off}, v{vT1}, 8, v{vW1off}")
    e(f"v_lshlrev_b32 v{vL16}, 4, v{vLane}")
    e(f"v_and_b32 v{vT0}, 3, v{vT0}")
    e(f"v_lshrrev_b32 v{vB8}, 5, v{vLane}")
    e(f"v_xor_b32 v{vT0}, v{vT0}, v{vB8}")
    e(f"v_lshlrev_b32 v{vT0}, 4, v{vT0}")
    e(f"v_and_b32 v{vDummy}, 31, v{vLane}")
    e(f"v_lshl_add_u32 v{vRd[0][0]}, v{vDummy}, 6, v{vT0}")
    e(f"v_xor_b32 v{vRd[0][1]}, 32, v{vRd[0][0]}")
    for wdw in range(1, nwin):
        e(f"v_add_u32 v{vRd[wdw][0]}, {wdw*2*SLOT}, v{vRd[0][0]}")
        e(f"v_add_u32 v{vRd[wdw][1]}, {wdw*2*SLOT}, v{vRd[0][1]}")
    e(f"v_bfe_u32 v{vT0}, v{vLane}, 2, 2")
    e(f"v_lshl_add_u32 v{vTr[0]}, v{vB8}, 3, v{vT0}")
    e(f"v_lshlrev_b32 v{vTr[0]}, 8, v{vTr[0]}")
    e(f"v_and_b32 v{vDummy}, 1, v{vT1}")
    e(f"v_lshlrev_b32 v{vDummy}, 1, v{vDummy}")
    e(f"v_bfe_u32 v{vT1}, v{vLane}, 1, 1")
    e(f"v_add_u32 v{vDummy}, v{vDummy}, v{vT1}")
    e(f"s_lshl_b32 s{sT}, s{sWv}, 2")
    e(f"v_add_u32 v{vDummy}, s{sT}, v{vDummy}")
    e(f"v_lshlrev_b32 v{vT0}, 2, v{vT0}")
    e(f"v_xor_b32 v{vDummy}, v{vDummy}, v{vT0}")
    e(f"v_lshl_add_u32 v{vTr[0]}, v{vDummy}, 4, v{vTr[0]}")
    e(f"v_and_b32 v{vDummy}, 1, v{vLane}")
    e(f"v_lshl_add_u32 v{vTr[0]}, v{vDummy}, 3, v{vTr[0]}")
    e(f"v_add_u32 v{vTr[0]}, 8192, v{vTr[0]}")
    for wdw in range(1, nwin):
        e(f"v_add_u32 v{vTr[wdw]}, {wdw*2*SLOT}, v{vTr[0]}")
    e(f"v_lshlrev_b32 v{vB8}, 3, v{vB8}")
    e(f"s_and_b32 s{sT}, s2, 1")
    e(f"s_lshr_b32 s{sT2}, s2, 1")
    e(f"s_lshl_b32 s{sT2}, s{sT2}, 7")
    e(f"s_lshl_b32 s{sMA}, s{sWv}, 4")
    e(f"s_add_u32 s{sT2}, s{sT2}, s{sMA}")
    e(f"s_lshl_b32 s{sMA}, s{sT}, 6")
    e(f"s_add_u32 s{sIdx[1]}, s{sT2}, s{sMA}")
    e(f"s_sub_u32 s{sIdx[0]}, s{sT2}, s{sMA}")
    e(f"s_add_u32 s{sIdx[0]}, s{sIdx[0]}, 64")
    e(f"s_mul_i32 s{sIdx[0]}, s{sIdx[0]}, 400"); e(f"s_mul_i32 s{sIdx[1]}, s{sIdx[1]}, 400")
    e(f"s_mul_i32 s{sMA}, s{sT}, 200")
    e(f"s_add_u32 s{sIdx[0]}, s{sIdx[0]}, s{sMA}"); e(f"s_add_u32 s{sIdx[1]}, s{sIdx[1]}, s{sMA}")
    e(f"s_mul_i32 s{sW1}, s{sT}, 409600")
    e(f"s_lshl_b32 s{sMA}, s{sWv}, 12")
    e(f"s_add_u32 s{sMW}, s{sMA}, 8192")
    e(f"s_lshl_b32 s{sPw}, s2, 15"); e(f"s_lshl_b32 s{sPw2}, s{sWv}, 13"); e(f"s_add_u32 s{sPw}, s{sPw}, s{sPw2}")
    e(f"s_xor_b32 s{sPr}, s{sPw}, 32768")
    e(f"s_add_u32 s{sPw2}, s{sPw}, 4096"); e(f"s_add_u32 s{sPr2}, s{sPr}, 4096")
    e("s_waitcnt lgkmcnt(0)")
    if stamps: e("s_memrealtime s[100:101]")
    def srd(r, b, size):
        e(f"s_mov_b32 s{r}, s{b}"); e(f"s_and_b32 s{r+1}, s{b+1}, 0xffff"); e(f"s_mov_b32 s{r+2}, {size}"); e(f"s_mov_b32 s{r+3}, 0x20000")
    srd(8, 44, 6553600); srd(16, 54, 819200); srd(36, 56, 256); srd(12, 46, 6400000)
    def load_idx(p):
        for m in range(3):
            g.vmem(f"buffer_load_dwordx4 v[{IDX[p]+4*m}:{IDX[p]+4*m+3}], v{vIdxOff}, s[8:11], s{sIdx[p]} offen offset:{m*64} {idx_aux}".rstrip(), f"idx{p}")
        g.vmem(f"buffer_load_dwordx2 v[{IDX[p]+12}:{IDX[p]+13}], v{vIdxOff}, s[8:11], s{sIdx[p]} offen offset:192 {idx_aux}".rstrip(), f"idx{p}")
    load_idx(0)
    if warm:
        e(f"s_lshr_b32 s{sT}, s2, 3"); e(f"s_and_b32 s{sT}, s{sT}, 31"); e(f"s_mul_i32 s{sT}, s{sT}, 12800")
        e(f"s_mul_i32 s{sT2}, s{sWv}, 3200"); e(f"s_add_u32 s{sT}, s{sT}, s{sT2}"); e(f"s_add_u32 s{sT}, s{sT}, s{sW1}")
        e(f"v_lshlrev_b32 v{vT0}, 7, v{vLane}")
        e(f"v_cmp_gt_u32 vcc, 25, v{vLane}")
        e("s_mov_b64 exec, vcc")
        g.vmem(f"buffer_load_dword v{vDummy}, v{vT0}, s[16:19], s{sT} offen", "warm")
        e("s_mov_b64 exec, -1")
    e(f"s_lshl_b32 s{sT}, s{sWv}, 6")
    for a in range(4):
        g.vmem(f"buffer_load_dwordx2 v[{B1RAW+2*a}:{B1RAW+2*a+1}], v{vB8}, s[36:39], s{sT} offen offset:{16*a}", "b1")
    e(f"s_add_u32 s{sW1}, s{sW1}, s{sMA}")
    e(f"s_lshl_b32 s{sMA}, s{sWv}, 10")
    srd(20, 66, 8388608 + (1 << 20)); srd(24, 64, 256); srd(28, 62, 32768); srd(32, 48, 425984); srd(40, 58, 256)
    e("s_load_dwordx4 s[68:71], s[50:51], 0"); e("s_load_dwordx2 s[72:73], s[50:51], 16"); e("s_load_dword s74, s[50:51], 24")
    e("s_load_dword s75, s[52:53], 0"); e("s_load_dword s76, s[60:61], 0")

    def dma_w1(k):
        slot = k % R
        e(f"s_add_u32 m0, s{sMW}, {slot*SLOT}")
        e("s_nop 0")
        for j in range(4):
            g.vmem(f"buffer_load_dwordx4 v{vW1off}, s[16:19], s{sW1} offen offset:{j*1024} {w1_aux} lds".replace("  ", " "), f"W{k}")
        e(f"s_add_u32 s{sW1}, s{sW1}, 16384")
    def dma_a(k):
        slot = k % R; p = k // 25; c = k % 25
        for j in range(2):
            pos = 2 * c + j
            m, cc, r = pos >> 4, (pos >> 2) & 3, pos & 3
            vt = vT0 if j == 0 else vT1
            e(f"s_add_u32 m0, s{sMA}, {slot*SLOT + j*4096}")
            e(f"v_add_u32_dpp v{vt}, v{IDX[p]+4*m+r}, v{vPiece} quad_perm:[{cc},{cc},{cc},{cc}] row_mask:0xf bank_mask:0xf")
            g.vmem(f"buffer_load_dwordx4 v{vt}, s[12:15], 0 offen {tbl_aux} lds".replace("  ", " "), f"A{k}")
    dma_w1(0); dma_w1(1)
    g.wait_vm({"idx0"})
    if stamps: e("s_memrealtime s[44:45]")
    for i in range(14): e(f"v_lshlrev_b32 v{IDX[0]+i}, 6, v{IDX[0]+i}")
    e("s_nop 1")
    dma_a(0); dma_a(1)
    for k in range(2, D):
        dma_w1(k); dma_a(k)
    e("s_waitcnt lgkmcnt(0)")
    for j in range(13):
        src = 68 + j // 2
        if j % 2 == 0: e(f"s_lshl_b32 s{78+j}, s{src}, 16")
        else: e(f"s_and_b32 s{78+j}, s{src}, 0xffff0000")
    e("s_lshl_b32 s75, s75, 16"); e("s_lshl_b32 s76, s76, 16")

    def mfma(t, F, eb, cin=None):
        acc = f"v[{ACC[t]}:{ACC[t]+15}]"
        e(f"v_mfma_f32_32x32x16_bf16 {acc}, {wfrag(F)}, v[{eb}:{eb+3}], {cin or acc}")

    for k in range(NCH):
        p = k // 25; c = k % 25; slot = k % R; win = slot // 2; so = (slot % 2) * SLOT
        g.c(f"---- chunk {k}")
        tags = {f"A{k}", f"W{k}"}
        if k == 0: tags |= {"b1"}
        g.wait_vm(tags)
        if k == 0:
            for a in range(4):
                for b in range(2):
                    e(f"v_lshlrev_b32 v{CINIT+4*a+2*b}, 16, v{B1RAW+2*a+b}")
                    e(f"v_and_b32 v{CINIT+4*a+2*b+1}, 0xffff0000, v{B1RAW+2*a+b}")
        if k == 14:
            assert "idx1" not in g.vm
            for i in range(14): e(f"v_lshlrev_b32 v{IDX[1]+i}, 6, v{IDX[1]+i}")
        if k == 30:
            assert "pst" not in g.vm
            g.c("signal: this wave's partial sums are written")
            e(f"s_lshr_b32 s{sT}, s2, 2"); e(f"s_lshl_b32 s{sT}, s{sT}, 2")
            e(f"s_and_b32 s{sT2}, s2, 3"); e(f"s_lshl_b32 s{sT2}, s{sT2}, 3"); e(f"s_lshl_b32 s{sT2}, 1, s{sT2}")
            e(f"v_mov_b32 v{vZ0}, s{sT}"); e(f"v_mov_b32 v{vZ1}, s{sT2}")
            e("s_mov_b64 exec, 1")
            g.vmem(f"buffer_atomic_add v{vZ1}, v{vZ0}, s[24:27], 0 offen sc1", "sig")
            e("s_mov_b64 exec, -1")
        if k == 42:
            assert "poll" not in g.vm
            g.c("partner ready?")
            e(f"s_xor_b32 s{sT}, s2, 1"); e(f"s_and_b32 s{sT}, s{sT}, 3"); e(f"s_lshl_b32 s{sT}, s{sT}, 3")
            e("s_mov_b32 s97, 0x40000")
            g.lab("L_poll")
            e(f"v_readfirstlane_b32 s{sT2}, v{vDummy}")
            e("s_nop 3")
            e(f"s_lshr_b32 s{sT2}, s{sT2}, s{sT}"); e(f"s_and_b32 s{sT2}, s{sT2}, 255")
            e(f"s_cmp_ge_u32 s{sT2}, 4"); e("s_cbranch_scc1 L_ready")
            e("s_sub_u32 s97, s97, 1"); e("s_cbranch_scc1 L_ready")
            e("s_sleep 4")
            e(f"buffer_load_dword v{vDummy}, v{vZ0}, s[24:27], 0 offen sc1")
            e("s_waitcnt vmcnt(0)")
            e("s_branch L_poll")
            g.lab("L_ready")
        e("s_barrier")
        if k == 25:
            g.c("publish the partner's partial sums")
            e("s_nop 15")
            for t in range(2):
                for a in range(4):
                    g.vmem(f"buffer_store_dwordx4 v[{ACC[t]+4*a}:{ACC[t]+4*a+3}], v{vL16}, s[20:23], s{sPw if t == 0 else sPw2} offen offset:{a*1024} sc1", "pst")
            if stamps: e("s_memrealtime s[46:47]")
        if k == 42:
            for t in range(2):
                for a in range(4):
                    g.vmem(f"buffer_load_dwordx4 v[{PART+16*t+4*a}:{PART+16*t+4*a+3}], v{vL16}, s[20:23], s{sPr if t == 0 else sPr2} offen offset:{a*1024} sc1", "pld")
        if k == 48:
            assert "pld" not in g.vm
            g.c("add the partner's partial sums")
            e("s_nop 15")
            for t in range(2):
                for r in range(16):
                    e(f"v_add_f32 v{ACC[t]+r}, v{ACC[t]+r}, v{PART+16*t+r}")
        def tr(j):
            for s in range(2):
                for u in range(2):
                    F = 2 * (2 * c + j) + s
                    e(f"ds_read_b64_tr_b16 {wfrag_half(F, u)}, v{vTr[win]} offset:{so + j*8192 + s*4096 + u*1024}")
        def rd(j, t, s, eb):
            e(f"ds_read_b128 v[{eb}:{eb+3}], v{vRd[win][s]} offset:{so + j*4096 + t*2048}")
        if p == 0: tr(0)
        rd(0, 0, 0, EB[0]); rd(0, 1, 0, EB[1]); rd(0, 0, 1, EB[2]); rd(0, 1, 1, EB[3])
        if p == 0: tr(1)
        kn = k + D
        if kn < NCH:
            if kn < 25: dma_w1(kn)
            dma_a(kn)
        if k == 8:
            load_idx(1)
        if k == 36:
            e(f"s_xor_b32 s{sT}, s2, 1"); e(f"s_lshr_b32 s{sT}, s{sT}, 2"); e(f"s_lshl_b32 s{sT}, s{sT}, 2")
            e(f"v_mov_b32 v{vZ0}, s{sT}")
            g.vmem(f"buffer_load_dword v{vDummy}, v{vZ0}, s[24:27], 0 offen sc1", "poll")
        if k == 40:
            e(f"s_lshl_b32 s{sT}, s{sWv}, 6")
            for a in range(4):
                g.vmem(f"buffer_load_dwordx2 v[{W2RAW+2*a}:{W2RAW+2*a+1}], v{vB8}, s[40:43], s{sT} offen offset:{16*a}", "w2")
            e(f"s_lshr_b32 s{sT}, s2, 1"); e(f"s_lshl_b32 s{sT}, s{sT}, 7"); e(f"s_and_b32 s{sT2}, s2, 1"); e(f"s_lshl_b32 s{sT2}, s{sT2}, 6")
            e(f"s_add_u32 s{sT}, s{sT}, s{sT2}"); e(f"s_mul_i32 s{sT}, s{sT}, 26")
            e(f"v_mul_u32_u24 v{vWide}, 26, v{vLane}")
            g.vmem(f"buffer_load_dwordx4 v[{XW}:{XW+3}], v{vWide}, s[32:35], s{sT} offen", "xw")
            g.vmem(f"buffer_load_dwordx2 v[{XW+4}:{XW+5}], v{vWide}, s[32:35], s{sT} offen offset:16", "xw")
            g.vmem(f"buffer_load_ushort v{XW+6}, v{vWide}, s[32:35], s{sT} offen offset:24", "xw")
        F0 = 2 * (2 * c); F1 = 2 * (2 * c + 1)
        first = (c == 0)
        cin0 = (f"v[{CINIT}:{CINIT+15}]" if p == 0 else "0") if first else None
        nT = 4 if p == 0 else 0
        e(f"s_waitcnt lgkmcnt({2 + nT})")
        mfma(0, F0, EB[0], cin0); mfma(1, F0, EB[1], cin0)
        rd(1, 0, 0, EB[0]); rd(1, 1, 0, EB[1])
        e(f"s_waitcnt lgkmcnt({2 + nT})")
        mfma(0, F0 + 1, EB[2]); mfma(1, F0 + 1, EB[3])
        rd(1, 0, 1, EB[2]); rd(1, 1, 1, EB[3])
        e("s_waitcnt lgkmcnt(2)")
        mfma(0, F1, EB[0]); mfma(1, F1, EB[1])
        e("s_waitcnt lgkmcnt(0)")
        mfma(0, F1 + 1, EB[2]); mfma(1, F1 + 1, EB[3])
        if k == 46:
            assert "w2" not in g.vm and "xw" not in g.vm
            for a in range(4):
                for b in range(2):
                    e(f"v_lshlrev_b32 v{W2F+4*a+2*b}, 16, v{W2RAW+2*a+b}")
                    e(f"v_and_b32 v{W2F+4*a+2*b+1}, 0xffff0000, v{W2RAW+2*a+b}")
            e(f"v_mov_b32 v{vWide}, s75"); e(f"v_add_f32 v{vWide}, s76, v{vWide}")
            for j in range(13):
                src = XW + j // 2
                if j % 2 == 0: e(f"v_lshlrev_b32 v{vT0}, 16, v{src}")
                else: e(f"v_and_b32 v{vT0}, 0xffff0000, v{src}")
                e(f"v_fmac_f32 v{vWide}, s{78+j}, v{vT0}")
    g.c("---- epilogue")
    e("s_nop 15"); e("s_nop 3")
    for t in range(2):
        z = vZ0 if t == 0 else vZ1
        for r in range(16):
            tmp = vT0 if r % 2 == 0 else vT1
            e(f"v_max_f32 v{tmp}, 0, v{ACC[t]+r}")
            if r == 0: e(f"v_mul_f32 v{z}, v{tmp}, v{W2F+r}")
            else: e(f"v_fmac_f32 v{z}, v{tmp}, v{W2F+r}")
    e("s_nop 1")
    e(f"v_permlane32_swap_b32 v{vZ0}, v{vZ1}")
    e("s_nop 1")
    e(f"v_add_f32 v{vZ0}, v{vZ0}, v{vZ1}")
    e(f"s_lshl_b32 s{sT}, s{sWv}, 8"); e(f"s_add_u32 s{sT}, s{sT}, {LDS_SCR}")
    e(f"v_lshl_add_u32 v{vT0}, v{vLane}, 2, s{sT}")
    e(f"ds_write_b32 v{vT0}, v{vZ0}")
    e("s_waitcnt lgkmcnt(0)"); e("s_barrier")
    e(f"s_cmp_lg_u32 s{sWv}, 0"); e("s_cbranch_scc1 L_fin" if stamps else "s_cbranch_scc1 L_done")
    e(f"v_lshlrev_b32 v{vT0}, 2, v{vLane}"); e(f"v_add_u32 v{vT0}, {LDS_SCR}, v{vT0}")
    e(f"ds_read2st64_b32 v[{EB[0]}:{EB[0]+1}], v{vT0} offset0:0 offset1:1")
    e(f"ds_read2st64_b32 v[{EB[0]+2}:{EB[0]+3}], v{vT0} offset0:2 offset1:3")
    e(f"s_lshr_b32 s{sT}, s2, 1"); e(f"s_lshl_b32 s{sT}, s{sT}, 7"); e(f"s_and_b32 s{sT2}, s2, 1"); e(f"s_lshl_b32 s{sT2}, s{sT2}, 6")
    e(f"s_add_u32 s{sT}, s{sT}, s{sT2}"); e(f"s_lshl_b32 s{sT}, s{sT}, 1")
    e(f"v_lshlrev_b32 v{vT1}, 1, v{vLane}")
    e("s_waitcnt lgkmcnt(0)")
    e(f"v_add_f32 v{EB[0]}, v{EB[0]}, v{EB[0]+1}"); e(f"v_add_f32 v{EB[0]+2}, v{EB[0]+2}, v{EB[0]+3}")
    e(f"v_add_f32 v{vWide}, v{vWide}, v{EB[0]}"); e(f"v_add_f32 v{vWide}, v{vWide}, v{EB[0]+2}")
    e(f"v_mul_f32 v{vWide}, 0xbfb8aa3b, v{vWide}")
    e(f"v_exp_f32 v{vWide}, v{vWide}"); e("s_nop 0")
    e(f"v_add_f32 v{vWide}, 1.0, v{vWide}")
    e(f"v_rcp_f32 v{vWide}, v{vWide}"); e("s_nop 0")
    e(f"v_cvt_pk_bf16_f32 v{vWide}, v{vWide}, v{vWide}")
    e(f"buffer_store_short v{vWide}, v{vT1}, s[28:31], s{sT} offen")
    if stamps:
        g.lab("L_fin")
        e("s_memrealtime s[48:49]"); e("s_waitcnt lgkmcnt(0)")
        e(f"s_lshl_b32 s{sT}, s2, 2"); e(f"s_add_u32 s{sT}, s{sT}, s{sWv}"); e(f"s_lshl_b32 s{sT}, s{sT}, 5"); e(f"s_add_u32 s{sT}, s{sT}, 8388608")
        e("v_mov_b32 v56, s98"); e("v_mov_b32 v57, s100"); e("v_mov_b32 v58, s44"); e("v_mov_b32 v59, s46"); e("v_mov_b32 v60, s48")
        e(f"v_mov_b32 v61, s{sT}"); e("s_mov_b64 exec, 1")
        e("buffer_store_dwordx4 v[56:59], v61, s[20:23], 0 offen"); e("buffer_store_dword v60, v61, s[20:23], 0 offen offset:16")
    g.lab("L_done")
    e("s_endpgm")
    g.L.append(f""".section .rodata,"a"
.p2align 6
.amdhsa_kernel {KN}_kernel
  .amdhsa_next_free_vgpr 512
  .amdhsa_next_free_sgpr 102
  .amdhsa_accum_offset 256
  .amdhsa_group_segment_fixed_size 0
  .amdhsa_kernarg_size 96
  .amdhsa_user_sgpr_count 2
  .amdhsa_user_sgpr_kernarg_segment_ptr 1
  .amdhsa_system_sgpr_workgroup_id_x 1
.end_amdhsa_kernel
""")
    return "\n".join(g.L)

if __name__ == "__main__":
    ap = argparse.ArgumentParser()
    ap.add_argument("-o", default=f"cdna_kernels/{KN}.s")
    ap.add_argument("--stamps", action="store_true")
    ap.add_argument("--R", type=int, default=6)
    ap.add_argument("--idx_aux", default="")
    ap.add_argument("--tbl_aux", default="")
    ap.add_argument("--w1_aux", default="")
    ap.add_argument("--nowarm", action="store_true")
    a = ap.parse_args()
    open(a.o, "w").write(gen(R=a.R, stamps=a.stamps, idx_aux=a.idx_aux, warm=not a.nowarm, tbl_aux=a.tbl_aux, w1_aux=a.w1_aux))
```

```python
import sys, argparse

KN = "standalone__deep_cross_wide_deep__recsys"

class G:
    def __init__(self):
        self.L = []
        self.vm = []
    def e(self, s): self.L.append("    " + s)
    def c(self, s): self.L.append("    ; " + s)
    def lab(self, s): self.L.append(s + ":")
    def vmem(self, s, tag):
        self.e(s); self.vm.append(tag)
        assert len(self.vm) <= 63, "vmcnt overflow"
    def wait_vm(self, tags, extra=""):
        idx = [i for i, t in enumerate(self.vm) if t in tags]
        if not idx:
            if extra: self.e("s_waitcnt " + extra)
            return
        last = max(idx)
        n = len(self.vm) - 1 - last
        self.e(f"s_waitcnt vmcnt({n}) {extra}".rstrip())
        self.vm = self.vm[last + 1:]

def gen(R=6, stamps=False, fine=False, seg=True, early_w=0, late_k=-1, late_use=6, warm_aux='', no_mfma=False, m16hack=False, xbf16=True, KPOLL=36, KCHK=42, no_rd=False, idx_aux="", warm=True, tbl_aux="", w1_aux=""):
    g = G(); e = g.e
    D = R - 1
    SLOT = 24576
    NCH = 50
    LDS_SCR = R * SLOT
    lds_bytes = LDS_SCR + 1024
    vLane, vPiece, vIdxOff, vW1off, vL16, vT0, vT1, vB8 = 1, 2, 3, 4, 5, 6, 7, 8
    nwin = (R + 1) // 2
    vRd = [[9 + 2 * i, 10 + 2 * i] for i in range(nwin)]
    vTr = [9 + 2 * nwin + i for i in range(nwin)]
    assert vTr[-1] < 20
    vDummy = 20; vWide = 21; vZ0 = 22; vZ1 = 23
    ACC = [24, 40]
    EB = [56, 60, 64, 68]
    IDX = [72, 88]
    CINIT = 240
    B1RAW = 232
    WV0 = 112
    def wfrag(F):
        if F < 36: return f"v[{WV0+4*F}:{WV0+4*F+3}]"
        a = 4 * (F - 36); return f"a[{a}:{a+3}]"
    def wfrag_half(F, u):
        if F < 36: b = WV0 + 4 * F + 2 * u; return f"v[{b}:{b+1}]"
        a = 4 * (F - 36) + 2 * u; return f"a[{a}:{a+1}]"
    PART = 112
    W2RAW = 104; W2F = 152
    XW = 224
    sIdx = [4, 5]; sW1 = 6; sMA = 7; sMW = 92; sPw = 93; sPw2 = 94; sPr = 95; sPr2 = 96; sT = 77; sT2 = 91; sWv = 3
    hdr = f"""; Wide&Deep forward: sigmoid(x_wide.w_wide + b_wide + relu(concat(table[idx]) @ W1 + b1) . W2 + b2)
; @launch grid=(256,1,1) block=(256,1,1) lds={lds_bytes}
.amdgcn_target "amdgcn-amd-amdhsa--gfx950"
.text
.globl {KN}_kernel
.p2align 8
.type {KN}_kernel,@function
{KN}_kernel:"""
    g.L.append(hdr)
    e("s_cmp_ge_u32 s2, 256"); e("s_cbranch_scc1 L_done")
    if stamps: e("s_memrealtime s[98:99]")
    e("s_load_dwordx16 s[44:59], s[0:1], 0")
    e("s_load_dwordx8 s[60:67], s[0:1], 64")
    e(f"v_and_b32 v{vLane}, 63, v0")
    e(f"v_lshrrev_b32 v{vT0}, 6, v0")
    e(f"v_lshrrev_b32 v{vT1}, 4, v{vLane}")
    e(f"v_readfirstlane_b32 s{sWv}, v{vT0}")
    e(f"v_and_b32 v{vPiece}, 3, v{vLane}")
    e(f"v_lshlrev_b32 v{vIdxOff}, 4, v{vPiece}")
    e(f"v_xor_b32 v{vPiece}, v{vPiece}, v{vT1}")
    e(f"v_lshlrev_b32 v{vPiece}, 4, v{vPiece}")
    e(f"v_lshrrev_b32 v{vT0}, 2, v{vLane}")
    e(f"v_mul_u32_u24 v{vDummy}, 400, v{vT0}")
    e(f"v_add_u32 v{vIdxOff}, v{vIdxOff}, v{vDummy}")
    e(f"v_lshlrev_b32 v{vW1off}, 2, v{vT1}")
    e(f"v_and_b32 v{vDummy}, 15, v{vLane}")
    e(f"v_xor_b32 v{vW1off}, v{vW1off}, v{vDummy}")
    e(f"v_lshlrev_b32 v{vW1off}, 4, v{vW1off}")
    e(f"v_lshl_add_u32 v{vW1off}, v{vT1}, 8, v{vW1off}")
    e(f"v_lshlrev_b32 v{vL16}, 4, v{vLane}")
    e(f"v_and_b32 v{vT0}, 3, v{vT0}")
    e(f"v_lshrrev_b32 v{vB8}, 5, v{vLane}")
    e(f"v_xor_b32 v{vT0}, v{vT0}, v{vB8}")
    e(f"v_lshlrev_b32 v{vT0}, 4, v{vT0}")
    e(f"v_and_b32 v{vDummy}, 31, v{vLane}")
    e(f"v_lshl_add_u32 v{vRd[0][0]}, v{vDummy}, 6, v{vT0}")
    e(f"v_xor_b32 v{vRd[0][1]}, 32, v{vRd[0][0]}")
    for wdw in range(1, nwin):
        e(f"v_add_u32 v{vRd[wdw][0]}, {wdw*2*SLOT}, v{vRd[0][0]}")
        e(f"v_add_u32 v{vRd[wdw][1]}, {wdw*2*SLOT}, v{vRd[0][1]}")
    e(f"v_bfe_u32 v{vT0}, v{vLane}, 2, 2")
    e(f"v_lshl_add_u32 v{vTr[0]}, v{vB8}, 3, v{vT0}")
    e(f"v_lshlrev_b32 v{vTr[0]}, 8, v{vTr[0]}")
    e(f"v_and_b32 v{vDummy}, 1, v{vT1}")
    e(f"v_lshlrev_b32 v{vDummy}, 1, v{vDummy}")
    e(f"v_bfe_u32 v{vT1}, v{vLane}, 1, 1")
    e(f"v_add_u32 v{vDummy}, v{vDummy}, v{vT1}")
    e(f"s_lshl_b32 s{sT}, s{sWv}, 2")
    e(f"v_add_u32 v{vDummy}, s{sT}, v{vDummy}")
    e(f"v_lshlrev_b32 v{vT0}, 2, v{vT0}")
    e(f"v_xor_b32 v{vDummy}, v{vDummy}, v{vT0}")
    e(f"v_lshl_add_u32 v{vTr[0]}, v{vDummy}, 4, v{vTr[0]}")
    e(f"v_and_b32 v{vDummy}, 1, v{vLane}")
    e(f"v_lshl_add_u32 v{vTr[0]}, v{vDummy}, 3, v{vTr[0]}")
    e(f"v_add_u32 v{vTr[0]}, 8192, v{vTr[0]}")
    for wdw in range(1, nwin):
        e(f"v_add_u32 v{vTr[wdw]}, {wdw*2*SLOT}, v{vTr[0]}")
    e(f"v_lshlrev_b32 v{vB8}, 3, v{vB8}")
    e(f"s_and_b32 s{sT}, s2, 1")
    e(f"s_lshr_b32 s{sT2}, s2, 1")
    e(f"s_lshl_b32 s{sT2}, s{sT2}, 7")
    e(f"s_lshl_b32 s{sMA}, s{sWv}, 4")
    e(f"s_add_u32 s{sT2}, s{sT2}, s{sMA}")
    e(f"s_lshl_b32 s{sMA}, s{sT}, 6")
    e(f"s_add_u32 s{sIdx[1]}, s{sT2}, s{sMA}")
    e(f"s_sub_u32 s{sIdx[0]}, s{sT2}, s{sMA}")
    e(f"s_add_u32 s{sIdx[0]}, s{sIdx[0]}, 64")
    e(f"s_mul_i32 s{sIdx[0]}, s{sIdx[0]}, 400"); e(f"s_mul_i32 s{sIdx[1]}, s{sIdx[1]}, 400")
    e(f"s_mul_i32 s{sMA}, s{sT}, 200")
    e(f"s_add_u32 s{sIdx[0]}, s{sIdx[0]}, s{sMA}"); e(f"s_add_u32 s{sIdx[1]}, s{sIdx[1]}, s{sMA}")
    e(f"s_mul_i32 s{sW1}, s{sT}, 409600")
    e(f"s_lshl_b32 s{sMA}, s{sWv}, 12")
    e(f"s_add_u32 s{sMW}, s{sMA}, 8192")
    e(f"s_lshl_b32 s{sPw}, s2, 15"); e(f"s_lshl_b32 s{sPw2}, s{sWv}, 13"); e(f"s_add_u32 s{sPw}, s{sPw}, s{sPw2}")
    e(f"s_xor_b32 s{sPr}, s{sPw}, 32768")
    e(f"s_add_u32 s{sPw2}, s{sPw}, 4096"); e(f"s_add_u32 s{sPr2}, s{sPr}, 4096")
    e("s_waitcnt lgkmcnt(0)")
    if stamps: e("s_memrealtime s[100:101]")
    def srd(r, b, size):
        e(f"s_mov_b32 s{r}, s{b}"); e(f"s_and_b32 s{r+1}, s{b+1}, 0xffff"); e(f"s_mov_b32 s{r+2}, {size}"); e(f"s_mov_b32 s{r+3}, 0x20000")
    srd(8, 44, 6553600); srd(16, 54, 819200); srd(36, 56, 256); srd(12, 46, 6400000)
    def load_idx(p):
        for m in range(3):
            g.vmem(f"buffer_load_dwordx4 v[{IDX[p]+4*m}:{IDX[p]+4*m+3}], v{vIdxOff}, s[8:11], s{sIdx[p]} offen offset:{m*64} {idx_aux}".rstrip(), f"idx{p}")
        g.vmem(f"buffer_load_dwordx2 v[{IDX[p]+12}:{IDX[p]+13}], v{vIdxOff}, s[8:11], s{sIdx[p]} offen offset:192 {idx_aux}".rstrip(), f"idx{p}")
    load_idx(0)
    if warm:
        e(f"s_lshr_b32 s{sT}, s2, 3"); e(f"s_and_b32 s{sT}, s{sT}, 31"); e(f"s_mul_i32 s{sT}, s{sT}, 12800")
        e(f"s_mul_i32 s{sT2}, s{sWv}, 3200"); e(f"s_add_u32 s{sT}, s{sT}, s{sT2}"); e(f"s_add_u32 s{sT}, s{sT}, s{sW1}")
        e(f"v_lshlrev_b32 v{vT0}, 7, v{vLane}")
        e(f"v_cmp_gt_u32 vcc, 25, v{vLane}")
        e("s_mov_b64 exec, vcc")
        g.vmem(f"buffer_load_dword v{vDummy}, v{vT0}, s[16:19], s{sT} offen {warm_aux}".rstrip(), "warm")
        e("s_mov_b64 exec, -1")
    e(f"s_lshl_b32 s{sT}, s{sWv}, 6")
    for a in range(4):
        g.vmem(f"buffer_load_dwordx2 v[{B1RAW+2*a}:{B1RAW+2*a+1}], v{vB8}, s[36:39], s{sT} offen offset:{16*a}", "b1")
    srd(40, 58, 256); srd(32, 48, 425984)
    e(f"s_add_u32 s{sW1}, s{sW1}, s{sMA}")
    e(f"s_lshl_b32 s{sMA}, s{sWv}, 10")
    srd(20, 66, 8388608 + (1 << 20)); srd(24, 64, 256); srd(28, 62, 32768)
    e(f"s_cmp_eq_u32 s{sWv}, 0"); e("s_cselect_b64 s[54:55], -1, 0")
    mW0 = "s[54:55]"
    e("s_load_dwordx4 s[68:71], s[50:51], 0"); e("s_load_dwordx2 s[72:73], s[50:51], 16"); e("s_load_dword s74, s[50:51], 24")
    e("s_load_dword s75, s[52:53], 0"); e("s_load_dword s76, s[60:61], 0")
    def late_loads():
        load_idx(1)
        e(f"s_lshl_b32 s{sT}, s{sWv}, 6")
        for a in range(4):
            g.vmem(f"buffer_load_dwordx2 v[{W2RAW+2*a}:{W2RAW+2*a+1}], v{vB8}, s[40:43], s{sT} offen offset:{16*a}", "w2")
        e(f"s_lshr_b32 s{sT}, s2, 1"); e(f"s_lshl_b32 s{sT}, s{sT}, 7"); e(f"s_and_b32 s{sT2}, s2, 1"); e(f"s_lshl_b32 s{sT2}, s{sT2}, 6")
        e(f"s_add_u32 s{sT}, s{sT}, s{sT2}"); e(f"s_mul_i32 s{sT}, s{sT}, 26")
        e(f"v_mul_u32_u24 v{vWide}, 26, v{vLane}")
        e(f"s_mov_b64 exec, {mW0}")
        g.vmem(f"buffer_load_dwordx4 v[{XW}:{XW+3}], v{vWide}, s[32:35], s{sT} offen", "xw")
        g.vmem(f"buffer_load_dwordx2 v[{XW+4}:{XW+5}], v{vWide}, s[32:35], s{sT} offen offset:16", "xw")
        g.vmem(f"buffer_load_ushort v{XW+6}, v{vWide}, s[32:35], s{sT} offen offset:24", "xw")
        e("s_mov_b64 exec, -1")

    def dma_w1(k):
        slot = k % R
        e(f"s_add_u32 m0, s{sMW}, {slot*SLOT}")
        e("s_nop 0")
        for j in range(4):
            g.vmem(f"buffer_load_dwordx4 v{vW1off}, s[16:19], s{sW1} offen offset:{j*1024} {w1_aux} lds".replace("  ", " "), f"W{k}")
        e(f"s_add_u32 s{sW1}, s{sW1}, 16384")
    def dma_a(k):
        slot = k % R; p = k // 25; c = k % 25
        for j in range(2):
            pos = 2 * c + j
            m, cc, r = pos >> 4, (pos >> 2) & 3, pos & 3
            vt = vT0 if j == 0 else vT1
            e(f"s_add_u32 m0, s{sMA}, {slot*SLOT + j*4096}")
            e(f"v_add_u32_dpp v{vt}, v{IDX[p]+4*m+r}, v{vPiece} quad_perm:[{cc},{cc},{cc},{cc}] row_mask:0xf bank_mask:0xf")
            g.vmem(f"buffer_load_dwordx4 v{vt}, s[12:15], 0 offen {tbl_aux} lds".replace("  ", " "), f"A{k}")
    sched = {k: [] for k in range(-1, NCH)}
    if seg:
        sched[-1] = [("A", 0), ("A", 1), ("W", 0), ("W", 1), ("A", 2), ("A", 3), ("W", 2), ("W", 3), ("W", 4)]
        for k in range(0, NCH):
            if k % 2 == 0:
                sched[k] += [("A", j) for j in (k + 4, k + 5) if j < NCH]
            else:
                sched[k] += [("W", j) for j in (k + 4, k + 5) if j < 25]
    else:
        for j in range(D): sched[-1] += [("A", j), ("W", j)]
        for k in range(0, NCH):
            if k + D < 25: sched[k].append(("W", k + D))
            if k + D < NCH: sched[k].append(("A", k + D))
    pst_i = [0]
    def pstamp():
        if fine:
            e("s_memrealtime s[48:49]"); e("s_waitcnt lgkmcnt(0)"); e(f"v_writelane_b32 v18, s48, {50 + pst_i[0]}"); pst_i[0] += 1
    def issue(step):
        for kind, j in sched[step]:
            (dma_a if kind == "A" else dma_w1)(j)
            if step == -1: pstamp()
    if early_w:
        for kind, j in list(sched[-1]):
            if kind == "W" and j < early_w:
                dma_w1(j); sched[-1].remove((kind, j))
    pstamp()
    g.wait_vm({"idx0"})
    pstamp()
    if stamps: e("s_memrealtime s[44:45]")
    for i in range(14): e(f"v_lshlrev_b32 v{IDX[0]+i}, 6, v{IDX[0]+i}")
    e("s_nop 1")
    issue(-1)
    if late_k < 0: late_loads()
    pstamp()
    e("s_waitcnt lgkmcnt(0)")
    for j in range(13):
        src = 68 + j // 2
        if j % 2 == 0: e(f"s_lshl_b32 s{78+j}, s{src}, 16")
        else: e(f"s_and_b32 s{78+j}, s{src}, 0xffff0000")
    e("s_lshl_b32 s75, s75, 16"); e("s_lshl_b32 s76, s76, 16")

    def mfma(t, F, eb, cin=None):
        acc = f"v[{ACC[t]}:{ACC[t]+15}]"
        if no_mfma: return
        if m16hack:
            for q in range(2):
                o = ACC[t] + 4 * ((2 * (F & 1) + q) & 3)
                e(f"v_mfma_f32_16x16x32_bf16 v[{o}:{o+3}], {wfrag(F)}, v[{eb}:{eb+3}], v[{o}:{o+3}]")
            return
        e(f"v_mfma_f32_32x32x16_bf16 {acc}, {wfrag(F)}, v[{eb}:{eb+3}], {cin or acc}")

    for k in range(NCH):
        p = k // 25; c = k % 25; slot = k % R; win = slot // 2; so = (slot % 2) * SLOT
        g.c(f"---- chunk {k}")
        tags = {f"A{k}", f"W{k}"}
        if k == 0: tags |= {"b1"}
        if fine: e("s_memtime s[48:49]")
        g.wait_vm(tags)
        if fine: e("s_memrealtime s[50:51]")
        if k == 0:
            for a in range(4):
                for b in range(2):
                    e(f"v_lshlrev_b32 v{CINIT+4*a+2*b}, 16, v{B1RAW+2*a+b}")
                    e(f"v_and_b32 v{CINIT+4*a+2*b+1}, 0xffff0000, v{B1RAW+2*a+b}")
        if k == late_use:
            assert "idx1" not in g.vm and "xw" not in g.vm
            for i in range(14): e(f"v_lshlrev_b32 v{IDX[1]+i}, 6, v{IDX[1]+i}")
            e(f"v_mov_b32 v{vWide}, s75"); e(f"v_add_f32 v{vWide}, s76, v{vWide}")
            for j in range(13):
                src = XW + j // 2
                if j % 2 == 0: e(f"v_lshlrev_b32 v{vT0}, 16, v{src}")
                else: e(f"v_and_b32 v{vT0}, 0xffff0000, v{src}")
                e(f"v_fmac_f32 v{vWide}, s{78+j}, v{vT0}")
        if k == KCHK:
            assert "poll" not in g.vm
            g.c("partner ready?")
            e(f"s_cmp_lg_u32 s{sWv}, 0"); e("s_cbranch_scc1 L_ready")
            e(f"s_xor_b32 s{sT}, s2, 1"); e(f"s_and_b32 s{sT}, s{sT}, 3"); e(f"s_lshl_b32 s{sT}, s{sT}, 3")
            e("s_mov_b32 s97, 0x40000")
            g.lab("L_poll")
            e(f"v_readfirstlane_b32 s{sT2}, v{vDummy}")
            e("s_nop 3")
            e(f"s_lshr_b32 s{sT2}, s{sT2}, s{sT}"); e(f"s_and_b32 s{sT2}, s{sT2}, 255")
            e(f"s_cmp_ge_u32 s{sT2}, 1"); e("s_cbranch_scc1 L_ready")
            e("s_sub_u32 s97, s97, 1"); e("s_cbranch_scc1 L_ready")
            e("s_sleep 4")
            e(f"buffer_load_dword v{vDummy}, v{vZ0}, s[24:27], 0 offen sc1")
            e("s_waitcnt vmcnt(0)")
            e("s_branch L_poll")
            g.lab("L_ready")
        e("s_barrier")
        if fine: e("s_memtime s[52:53]")
        if k == 30:
            assert "pst" not in g.vm
            g.c("signal: all four waves' partial sums are written")
            e(f"s_lshr_b32 s{sT}, s2, 2"); e(f"s_lshl_b32 s{sT}, s{sT}, 2")
            e(f"s_and_b32 s{sT2}, s2, 3"); e(f"s_lshl_b32 s{sT2}, s{sT2}, 3"); e(f"s_lshl_b32 s{sT2}, 1, s{sT2}")
            e(f"v_mov_b32 v{vZ0}, s{sT}"); e(f"v_mov_b32 v{vZ1}, s{sT2}")
            e(f"s_and_b64 exec, {mW0}, 1")
            g.vmem(f"buffer_atomic_add v{vZ1}, v{vZ0}, s[24:27], 0 offen sc1", "sig")
            e("s_mov_b64 exec, -1")
        if k == 25:
            g.c("publish the partner's partial sums (rounded to bf16 pairs)")
            e("s_nop 15")
            if xbf16:
                for t in range(2):
                    for i in range(8):
                        e(f"v_cvt_pk_bf16_f32 v{IDX[0]+8*t+i}, v{ACC[t]+2*i}, v{ACC[t]+2*i+1}")
                for a in range(4):
                    g.vmem(f"buffer_store_dwordx4 v[{IDX[0]+4*a}:{IDX[0]+4*a+3}], v{vL16}, s[20:23], s{sPw} offen offset:{a*1024} sc1", "pst")
            else:
                for t in range(2):
                    for a in range(4):
                        g.vmem(f"buffer_store_dwordx4 v[{ACC[t]+4*a}:{ACC[t]+4*a+3}], v{vL16}, s[20:23], s{sPw if t == 0 else sPw2} offen offset:{a*1024} sc1", "pst")
            if stamps: e("s_memrealtime s[46:47]")
        if k == KCHK:
            if xbf16:
                for a in range(4):
                    g.vmem(f"buffer_load_dwordx4 v[{PART+4*a}:{PART+4*a+3}], v{vL16}, s[20:23], s{sPr} offen offset:{a*1024} sc1", "pld")
            else:
                for t in range(2):
                    for a in range(4):
                        g.vmem(f"buffer_load_dwordx4 v[{PART+16*t+4*a}:{PART+16*t+4*a+3}], v{vL16}, s[20:23], s{sPr if t == 0 else sPr2} offen offset:{a*1024} sc1", "pld")
        if k == 48:
            assert "pld" not in g.vm
            g.c("add the partner's partial sums")
            e("s_nop 15")
            for t in range(2):
                for r in range(16):
                    if xbf16:
                        src = PART + 8 * t + r // 2
                        tmp = vT0 if r % 2 == 0 else vT1
                        if r % 2 == 0: e(f"v_lshlrev_b32 v{tmp}, 16, v{src}")
                        else: e(f"v_and_b32 v{tmp}, 0xffff0000, v{src}")
                        e(f"v_add_f32 v{ACC[t]+r}, v{ACC[t]+r}, v{tmp}")
                    else:
                        e(f"v_add_f32 v{ACC[t]+r}, v{ACC[t]+r}, v{PART+16*t+r}")
        def tr(j):
            for s in range(2):
                for u in range(2):
                    F = 2 * (2 * c + j) + s
                    e(f"ds_read_b64_tr_b16 {wfrag_half(F, u)}, v{vTr[win]} offset:{so + j*8192 + s*4096 + u*1024}")
        def rd(j, t, s, eb):
            if no_rd:
                e(f"ds_read_b32 v{eb}, v{vRd[win][s]} offset:{so + j*4096 + t*2048}"); return
            e(f"ds_read_b128 v[{eb}:{eb+3}], v{vRd[win][s]} offset:{so + j*4096 + t*2048}")
        if p == 0: tr(0)
        rd(0, 0, 0, EB[0]); rd(0, 1, 0, EB[1]); rd(0, 0, 1, EB[2]); rd(0, 1, 1, EB[3])
        if p == 0: tr(1)
        issue(k)
        if k == late_k: late_loads()
        if k == KPOLL:
            e(f"s_xor_b32 s{sT}, s2, 1"); e(f"s_lshr_b32 s{sT}, s{sT}, 2"); e(f"s_lshl_b32 s{sT}, s{sT}, 2")
            e(f"v_mov_b32 v{vZ0}, s{sT}")
            e(f"s_and_b64 exec, {mW0}, 1")
            g.vmem(f"buffer_load_dword v{vDummy}, v{vZ0}, s[24:27], 0 offen sc1", "poll")
            e("s_mov_b64 exec, -1")
        F0 = 2 * (2 * c); F1 = 2 * (2 * c + 1)
        first = (c == 0)
        cin0 = (f"v[{CINIT}:{CINIT+15}]" if p == 0 else "0") if first else None
        nT = 4 if p == 0 else 0
        e(f"s_waitcnt lgkmcnt({2 + nT})")
        mfma(0, F0, EB[0], cin0); mfma(1, F0, EB[1], cin0)
        rd(1, 0, 0, EB[0]); rd(1, 1, 0, EB[1])
        e(f"s_waitcnt lgkmcnt({2 + nT})")
        mfma(0, F0 + 1, EB[2]); mfma(1, F0 + 1, EB[3])
        rd(1, 0, 1, EB[2]); rd(1, 1, 1, EB[3])
        e("s_waitcnt lgkmcnt(2)")
        mfma(0, F1, EB[0]); mfma(1, F1, EB[1])
        e("s_waitcnt lgkmcnt(0)")
        mfma(0, F1 + 1, EB[2]); mfma(1, F1 + 1, EB[3])
        if fine:
            e(f"v_writelane_b32 v0, s48, {k}"); e(f"v_writelane_b32 v18, s50, {k}"); e(f"v_writelane_b32 v19, s52, {k}")
        if k == 46:
            assert "w2" not in g.vm
            for a in range(4):
                for b in range(2):
                    e(f"v_lshlrev_b32 v{W2F+4*a+2*b}, 16, v{W2RAW+2*a+b}")
                    e(f"v_and_b32 v{W2F+4*a+2*b+1}, 0xffff0000, v{W2RAW+2*a+b}")
    g.c("---- epilogue")
    e("s_nop 15"); e("s_nop 3")
    for t in range(2):
        z = vZ0 if t == 0 else vZ1
        for r in range(16):
            tmp = vT0 if r % 2 == 0 else vT1
            e(f"v_max_f32 v{tmp}, 0, v{ACC[t]+r}")
            if r == 0: e(f"v_mul_f32 v{z}, v{tmp}, v{W2F+r}")
            else: e(f"v_fmac_f32 v{z}, v{tmp}, v{W2F+r}")
    e("s_nop 1")
    e(f"v_permlane32_swap_b32 v{vZ0}, v{vZ1}")
    e("s_nop 1")
    e(f"v_add_f32 v{vZ0}, v{vZ0}, v{vZ1}")
    e(f"s_lshl_b32 s{sT}, s{sWv}, 8"); e(f"s_add_u32 s{sT}, s{sT}, {LDS_SCR}")
    e(f"v_lshl_add_u32 v{vT0}, v{vLane}, 2, s{sT}")
    e(f"ds_write_b32 v{vT0}, v{vZ0}")
    e("s_waitcnt lgkmcnt(0)"); e("s_barrier")
    e(f"s_cmp_lg_u32 s{sWv}, 0"); e("s_cbranch_scc1 L_fin" if stamps else "s_cbranch_scc1 L_done")
    e(f"v_lshlrev_b32 v{vT0}, 2, v{vLane}"); e(f"v_add_u32 v{vT0}, {LDS_SCR}, v{vT0}")
    e(f"ds_read2st64_b32 v[{EB[0]}:{EB[0]+1}], v{vT0} offset0:0 offset1:1")
    e(f"ds_read2st64_b32 v[{EB[0]+2}:{EB[0]+3}], v{vT0} offset0:2 offset1:3")
    e(f"s_lshr_b32 s{sT}, s2, 1"); e(f"s_lshl_b32 s{sT}, s{sT}, 7"); e(f"s_and_b32 s{sT2}, s2, 1"); e(f"s_lshl_b32 s{sT2}, s{sT2}, 6")
    e(f"s_add_u32 s{sT}, s{sT}, s{sT2}"); e(f"s_lshl_b32 s{sT}, s{sT}, 1")
    e(f"v_lshlrev_b32 v{vT1}, 1, v{vLane}")
    e("s_waitcnt lgkmcnt(0)")
    e(f"v_add_f32 v{EB[0]}, v{EB[0]}, v{EB[0]+1}"); e(f"v_add_f32 v{EB[0]+2}, v{EB[0]+2}, v{EB[0]+3}")
    e(f"v_add_f32 v{vWide}, v{vWide}, v{EB[0]}"); e(f"v_add_f32 v{vWide}, v{vWide}, v{EB[0]+2}")
    e(f"v_mul_f32 v{vWide}, 0xbfb8aa3b, v{vWide}")
    e(f"v_exp_f32 v{vWide}, v{vWide}"); e("s_nop 0")
    e(f"v_add_f32 v{vWide}, 1.0, v{vWide}")
    e(f"v_rcp_f32 v{vWide}, v{vWide}"); e("s_nop 0")
    e(f"v_cvt_pk_bf16_f32 v{vWide}, v{vWide}, v{vWide}")
    e(f"buffer_store_short v{vWide}, v{vT1}, s[28:31], s{sT} offen")
    if stamps:
        g.lab("L_fin")
        e("s_memrealtime s[48:49]"); e("s_waitcnt lgkmcnt(0)")
        e(f"s_lshl_b32 s{sT}, s2, 2"); e(f"s_add_u32 s{sT}, s{sT}, s{sWv}"); e(f"s_lshl_b32 s{sT}, s{sT}, 5"); e(f"s_add_u32 s{sT}, s{sT}, 8388608")
        e("v_mov_b32 v56, s98"); e("v_mov_b32 v57, s100"); e("v_mov_b32 v58, s44"); e("v_mov_b32 v59, s46"); e("v_mov_b32 v60, s48")
        e(f"v_mov_b32 v61, s{sT}"); e("s_mov_b64 exec, 1")
        e("buffer_store_dwordx4 v[56:59], v61, s[20:23], 0 offen"); e("buffer_store_dword v60, v61, s[20:23], 0 offen offset:16")
        if fine:
            e("s_mov_b64 exec, -1")
            e(f"s_lshl_b32 s{sT}, s2, 2"); e(f"s_add_u32 s{sT}, s{sT}, s{sWv}"); e(f"s_mul_i32 s{sT}, s{sT}, 768"); e(f"s_add_u32 s{sT}, s{sT}, {8388608 + 65536}")
            e(f"v_lshlrev_b32 v61, 2, v{vLane}")
            e(f"buffer_store_dword v0, v61, s[20:23], s{sT} offen"); e(f"buffer_store_dword v18, v61, s[20:23], s{sT} offen offset:256"); e(f"buffer_store_dword v19, v61, s[20:23], s{sT} offen offset:512")
    g.lab("L_done")
    e("s_endpgm")
    g.L.append(f""".section .rodata,"a"
.p2align 6
.amdhsa_kernel {KN}_kernel
  .amdhsa_next_free_vgpr 512
  .amdhsa_next_free_sgpr 102
  .amdhsa_accum_offset 256
  .amdhsa_group_segment_fixed_size 0
  .amdhsa_kernarg_size 96
  .amdhsa_user_sgpr_count 2
  .amdhsa_user_sgpr_kernarg_segment_ptr 1
  .amdhsa_system_sgpr_workgroup_id_x 1
.end_amdhsa_kernel
""")
    return "\n".join(g.L)

if __name__ == "__main__":
    ap = argparse.ArgumentParser()
    ap.add_argument("-o", default=f"cdna_kernels/{KN}.s")
    ap.add_argument("--stamps", action="store_true")
    ap.add_argument("--fine", action="store_true")
    ap.add_argument("--R", type=int, default=6)
    ap.add_argument("--noseg", action="store_true")
    ap.add_argument("--xf32", action="store_true")
    ap.add_argument("--kpoll", type=int, default=36)
    ap.add_argument("--kchk", type=int, default=42)
    ap.add_argument("--no_mfma", action="store_true")
    ap.add_argument("--m16hack", action="store_true")
    ap.add_argument("--no_rd", action="store_true")
    ap.add_argument("--early_w", type=int, default=0)
    ap.add_argument("--late_k", type=int, default=-1)
    ap.add_argument("--late_use", type=int, default=6)
    ap.add_argument("--warm_aux", default="")
    ap.add_argument("--idx_aux", default="")
    ap.add_argument("--tbl_aux", default="")
    ap.add_argument("--w1_aux", default="")
    ap.add_argument("--nowarm", action="store_true")
    a = ap.parse_args()
    open(a.o, "w").write(gen(R=a.R, stamps=a.stamps or a.fine, fine=a.fine, seg=not a.noseg, early_w=a.early_w, late_k=a.late_k, late_use=a.late_use, warm_aux=a.warm_aux, no_mfma=a.no_mfma, m16hack=a.m16hack, xbf16=not a.xf32, KPOLL=a.kpoll, KCHK=a.kchk, no_rd=a.no_rd, idx_aux=a.idx_aux, warm=not a.nowarm, tbl_aux=a.tbl_aux, w1_aux=a.w1_aux))
```
